```python
import torch

def _softmax(x, axis=-1):
    return torch.softmax(x, dim=axis)
def _gelu(x):
    return torch.nn.functional.gelu(x, approximate="tanh")
def _silu(x):
    return torch.nn.functional.silu(x)
def _sigmoid(x):
    return torch.sigmoid(x)
def _layernorm(x, axis=-1, eps=1e-5):
    m = x.mean(dim=axis, keepdim=True)
    v = x.var(dim=axis, keepdim=True, unbiased=False)
    return (x - m) / torch.sqrt(v + eps)
def _scatter_add(tgt, idx, src, axis=0):
    return tgt.clone().index_add_(axis, idx, src)
def _segment_sum(src, seg, n):
    out = torch.zeros((n,) + src.shape[1:], dtype=src.dtype)
    return out.index_add_(0, seg, src)
def _pad(x, pw):
    flat = tuple(v for pair in reversed(pw) for v in pair)
    return torch.nn.functional.pad(x, flat)

kernel_name = 'concat_heads__ssm_conv_s4d__spectral_gfnet__prompt'

def setup_inputs():

    _w = (lambda a: (lambda t: t.to(torch.bfloat16) if t.is_floating_point() else t)(torch.as_tensor(a)))
    def _A_setup():
        Bsz, L, D, N = 1, 2048, 640, 128
        return {
            "u": _w((lambda *s: torch.randn(*s, dtype=torch.bfloat16) * 0.05)(Bsz, L, D)),
            "log_A_real": _w((lambda *s: torch.randn(*s, dtype=torch.bfloat16) * 6.4)(D, N) * 0.5),
            "A_imag": _w((lambda *s: torch.randn(*s, dtype=torch.bfloat16) * 0.05)(D, N) * 3.14),
            "C_real": _w((lambda *s: torch.randn(*s, dtype=torch.bfloat16) * 0.05)(D, N) / N ** 0.5),
            "C_imag": _w((lambda *s: torch.randn(*s, dtype=torch.bfloat16) * 0.05)(D, N) / N ** 0.5),
            "log_dt": _w((lambda *s: torch.randn(*s, dtype=torch.bfloat16) * 0.05)(D) * 0.5 - 4.0),
            "D_skip": _w((lambda *s: torch.randn(*s, dtype=torch.bfloat16) * 0.05)(D)),
        }
    _A_in = _A_setup()

    def _B_setup():
        B, S, D = 1, 2048, 640
        Df = D // 2 + 1
        return {
            "x": _w((lambda *s: torch.randn(*s, dtype=torch.bfloat16) * 0.05)(B, S, D)),
            "w_r": _w((lambda *s: torch.randn(*s, dtype=torch.bfloat16) * 0.8)(S, Df) * 0.02),
            "w_i": _w((lambda *s: torch.randn(*s, dtype=torch.bfloat16) * 0.8)(S, Df) * 0.02),
        }
    _B_in = _B_setup()

    return {
        "A_u": _A_in["u"],
        "A_log_A_real": _A_in["log_A_real"],
        "A_A_imag": _A_in["A_imag"],
        "A_C_real": _A_in["C_real"],
        "A_C_imag": _A_in["C_imag"],
        "A_log_dt": _A_in["log_dt"],
        "A_D_skip": _A_in["D_skip"],
        "B_x": _B_in["x"],
        "B_w_r": _B_in["w_r"],
        "B_w_i": _B_in["w_i"],
    }

def reference(A_u, A_log_A_real, A_A_imag, A_C_real, A_C_imag, A_log_dt, A_D_skip, B_x, B_w_r, B_w_i):
    def _A_ref(u, log_A_real, A_imag, C_real, C_imag, log_dt, D_skip):
        L = u.shape[1]
        dt = torch.exp(log_dt)
        A = -torch.exp(log_A_real) + 1j * A_imag
        C = (C_real + 1j * C_imag) * dt[:, None]
        pos = (lambda x, dt: x.to(dt))(torch.arange(L), log_dt.dtype)
        P = torch.exp((A * dt[:, None])[:, :, None] * pos[None, None, :])
        K = 2.0 * torch.einsum("dn,dnl->dl", C, P).real
        L2 = 2 * L
        u_t = (lambda x, *d: x.permute(*d))(u, 0, 2, 1)
        Kf = (lambda x, *a, **k: torch.fft.rfft(x.float(), *a, **k))(K, L2)
        Uf = (lambda x, *a, **k: torch.fft.rfft(x.float(), *a, **k))(u_t, L2)
        y = (lambda x, *a, **k: torch.fft.irfft(x, *a, **k).to(torch.bfloat16))(Uf * Kf[None, :, :], L2)[:, :, :L]
        y = (lambda x, *d: x.permute(*d))(y, 0, 2, 1)
        return y + u * D_skip[None, None, :]

    def _B_ref(x, w_r, w_i):
        B, S, D = x.shape
        X = (lambda x, axes=(-2,-1): torch.fft.rfft2(x.float(), dim=axes))(x, axes=(-2, -1))
        W = w_r + 1j * w_i
        X = X * W
        y = (lambda x, s, axes=(-2,-1): torch.fft.irfft2(x, s=s, dim=axes).to(torch.bfloat16))(X, (S, D), axes=(-2, -1))
        return y

    a = _A_ref(A_u, A_log_A_real, A_A_imag, A_C_real, A_C_imag, A_log_dt, A_D_skip)
    b = _B_ref(B_x, B_w_r, B_w_i)
    return torch.concatenate([a, b], axis=-1)
```

```python
import re

TRANS = ("v_exp_f32", "v_log_f32", "v_rcp_f32", "v_rsq_f32", "v_sqrt_f32", "v_sin_f32", "v_cos_f32")

def regs_of(tok):
    tok = tok.strip()
    neg = tok.lstrip('-')
    if neg.startswith('abs(') or neg.startswith('|'):
        neg = neg.replace('abs(', '').replace(')', '').replace('|', '')
    t = neg
    m = re.fullmatch(r'([vsa])(\d+)', t)
    if m: return {(m.group(1), int(m.group(2)))}
    m = re.fullmatch(r'([vsa])\[(\d+):(\d+)\]', t)
    if m: return {(m.group(1), i) for i in range(int(m.group(2)), int(m.group(3)) + 1)}
    if t == 'vcc': return {('vcc', 0)}
    if t in ('vcc_lo', 'vcc_hi'): return {('vcc', 0)}
    if t == 'exec': return {('exec', 0)}
    if t == 'm0': return {('m0', 0)}
    return set()

class Ins:
    def __init__(self, text):
        self.text = text
        s = text.split(';')[0].strip()
        self.is_label = s.endswith(':')
        self.is_dir = s.startswith('.') or s == ''
        self.op = ''
        self.ops = []
        if self.is_label or self.is_dir: return
        parts = s.split(None, 1)
        self.op = parts[0]
        rest = parts[1] if len(parts) > 1 else ''
        toks = []; depth = 0; cur = ''
        for ch in rest:
            if ch == '[': depth += 1
            if ch == ']': depth -= 1
            if ch == ',' and depth == 0:
                toks.append(cur.strip()); cur = ''
            else: cur += ch
        if cur.strip(): toks.append(cur.strip())
        self.mods = ''
        if toks:
            last = toks[-1].split(None, 1)
            toks[-1] = last[0]
            self.mods = last[1] if len(last) > 1 else ''
        self.ops = toks
        self.classify()
    def classify(self):
        op = self.op; o = self.ops
        self.valu = op.startswith('v_') and not op.startswith('v_mfma') and not op.startswith('v_smfmac')
        self.mfma = op.startswith('v_mfma')
        self.trans = any(op.startswith(t) for t in TRANS)
        self.salu = op.startswith('s_') and not op.startswith(('s_load', 's_waitcnt', 's_nop', 's_barrier', 's_branch', 's_cbranch', 's_endpgm', 's_sleep', 's_setprio', 's_memtime', 's_memrealtime'))
        self.ds = op.startswith('ds_')
        self.vmem = op.startswith(('buffer_', 'global_', 'flat_'))
        self.lds_dma = self.vmem and (' lds' in (' ' + self.mods) or 'load_lds' in op)
        self.dpp = '_dpp' in op or 'row_' in self.mods or 'quad_perm' in self.mods
        self.permlane = op.startswith('v_permlane')
        self.readlane = op.startswith(('v_readlane', 'v_readfirstlane'))
        w = set(); r = set()
        R = lambda i: regs_of(o[i]) if i < len(o) else set()
        if self.mfma:
            w = R(0); r = R(1) | R(2) | R(3)
            self.srcC = R(3); self.srcAB = R(1) | R(2)
            self.passes = 8 if '32x32x16' in op else (4 if '16x16x32' in op else 16)
        elif self.valu:
            if self.permlane and 'swap' in op:
                w = R(0) | R(1); r = R(0) | R(1)
            elif op.startswith('v_cmp'):
                w = R(0); r = set().union(*[R(i) for i in range(1, len(o))])
                if op.startswith('v_cmpx'): w |= {('exec', 0)}
            elif op.startswith(('v_add_co', 'v_sub_co', 'v_addc_co', 'v_subb_co', 'v_subrev_co')):
                w = R(0) | R(1); r = set().union(*[R(i) for i in range(2, len(o))])
            else:
                w = R(0); r = set().union(*[R(i) for i in range(1, len(o))]) if len(o) > 1 else set()
                if op.startswith(('v_fmac', 'v_mac', 'v_dot2c', 'v_writelane')): r |= R(0)
                if op.startswith('v_cndmask') and len(o) == 3: r |= {('vcc', 0)}
                if 'd16' in op: r |= R(0)
        elif self.ds:
            if op.startswith(('ds_read', 'ds_bpermute', 'ds_permute', 'ds_swizzle')):
                w = R(0); r = set().union(*[R(i) for i in range(1, len(o))])
            else:
                r = set().union(*[R(i) for i in range(len(o))])
        elif self.vmem:
            if self.lds_dma:
                r = set().union(*[R(i) for i in range(len(o))]) | {('m0', 0)}
            elif '_load' in op:
                w = R(0); r = set().union(*[R(i) for i in range(1, len(o))])
                if 'd16' in op: r |= R(0)
            elif 'atomic' in op:
                r = set().union(*[R(i) for i in range(len(o))])
                if 'sc0' in self.mods: w = R(0)
            else:
                r = set().union(*[R(i) for i in range(len(o))])
            self.wide_store = ('store' in op) and (op.endswith('x3') or op.endswith('x4'))
            if self.wide_store:
                self.store_data = R(0) if op.startswith('buffer_') else R(1)
        elif op.startswith('s_'):
            if op.startswith(('s_cmp', 's_cbranch', 's_branch', 's_waitcnt', 's_nop', 's_barrier', 's_endpgm', 's_sleep', 's_setprio', 's_bitcmp')):
                r = set().union(*[R(i) for i in range(len(o))]) if o else set()
            elif op.startswith(('s_and_saveexec', 's_or_saveexec', 's_andn2_saveexec')):
                w = R(0) | {('exec', 0)}; r = R(1) | {('exec', 0)}
            else:
                w = R(0); r = set().union(*[R(i) for i in range(1, len(o))]) if len(o) > 1 else set()
        self.w = w; self.r = r
    def states(self):
        if self.op == 's_nop':
            return int(self.ops[0], 0) + 1
        return 1

def need(prod, cons):
    n = 0
    vw = {x for x in prod.w if x[0] in 'va'}
    if prod.valu:
        if cons.mfma and (vw & cons.r): n = max(n, 2)
        if cons.valu and prod.trans and not cons.trans and (vw & cons.r): n = max(n, 1)
        if cons.valu and cons.permlane and (vw & cons.r): n = max(n, 2)
        if cons.valu and cons.readlane and (vw & cons.r): n = max(n, 1)
        if cons.valu and cons.dpp and (vw & cons.r): n = max(n, 2)
        sw = {x for x in prod.w if x[0] in ('s', 'vcc')}
        if sw:
            if cons.valu and (sw & cons.r): n = max(n, 4 if cons.readlane or cons.op.startswith('v_writelane') else 2)
            if cons.vmem and (sw & cons.r): n = max(n, 5)
            if cons.salu and (sw & cons.r): n = max(n, 4)
            if cons.op.startswith('s_cbranch_vcc') and ('vcc', 0) in sw: n = max(n, 5)
        if ('exec', 0) in prod.w:
            if cons.mfma: n = max(n, 4)
            if cons.readlane or cons.permlane: n = max(n, 4)
            if cons.dpp: n = max(n, 5)
    if prod.mfma:
        p = prod.passes
        big = {4: 8, 8: 12, 16: 20}[p]
        ovl = {4: 6, 8: 10, 16: 18}[p]
        war = {4: 3, 8: 7, 16: 15}[p]
        if cons.mfma:
            if prod.w & cons.srcAB: n = max(n, big)
            if prod.w & cons.srcC:
                if not (prod.w == cons.srcC and prod.passes == cons.passes): n = max(n, ovl)
            if (prod.w & cons.w) and not (prod.w & cons.srcC): n = max(n, ovl)
        elif cons.valu or cons.ds or cons.vmem:
            if prod.w & (cons.r | cons.w): n = max(n, big)
            if cons.valu and (prod.srcC & cons.w): n = max(n, war)
    if prod.salu and ('m0', 0) in prod.w and (cons.lds_dma if cons.op else False): n = max(n, 1)
    if prod.vmem and getattr(prod, 'wide_store', False):
        if prod.store_data & cons.w:
            n = max(n, 2 if cons.valu else 1)
    return n

class Asm:
    def __init__(self):
        self.lines = []
    def __call__(self, text):
        for ln in text.split('\n'):
            if ln.strip() == '' : continue
            self.lines.append(ln.strip())
    def label(self, name): self.lines.append(name + ':')
    def comment(self, c): self.lines.append('; ' + c)
    def pad(self, lookback=24):
        out = []; hist = []
        npad = 0; pend = set()
        for ln in self.lines:
            if ln.startswith(';'):
                out.append(ln); continue
            ins = Ins(ln)
            if ins.is_dir:
                out.append(ln); continue
            if ins.is_label:
                out.append(ln)
                continue
            if ins.op.startswith('s_load'):
                pend |= regs_of(ins.ops[0])
            elif ins.op == 's_waitcnt' and 'lgkmcnt(0)' in ln:
                pend = set()
            elif pend & (ins.r | ins.w):
                raise RuntimeError('use of an SGPR with a scalar load in flight: ' + ln)
            req = 0; dist = 0
            for p in reversed(hist[-lookback:]):
                k = need(p, ins)
                if k > dist: req = max(req, k - dist)
                dist += p.states()
                if dist >= 20: break
            while req > 0:
                k = min(req, 16)
                nop = Ins('s_nop %d' % (k - 1)); hist.append(nop); out.append('  s_nop %d' % (k - 1)); req -= k; npad += 1
            hist.append(ins); out.append('  ' + ln)
        return out, npad
```

```python
from asmlib import Asm
from model import OFF_X1, OFF_WT, OFF_UT, OFF_KR, OFF_Z, OFF_YT
import math

N_KGEN = 320
N_BROW = 256
N_TILE = 176
P1_LDS = 36864

def f2u(x):
    import struct
    return struct.unpack('<I', struct.pack('<f', x))[0]
def hexf(x): return '0x%08x' % f2u(x)

STAMP = False
OFF_STAMP = 0x1100000
def end(a):
    if STAMP:
        a('s_waitcnt vmcnt(0) lgkmcnt(0)')
        a('s_memrealtime s[92:93]')
        a('s_waitcnt lgkmcnt(0)')
        a('s_lshl_b32 s94, s2, 2')
        a('s_add_u32 s94, s94, s3')
        a('s_memtime s[84:85]')
        a('s_waitcnt lgkmcnt(0)')
        a('s_lshl_b32 s94, s94, 5')
        a(f's_add_u32 s94, s94, {OFF_STAMP} + STAMP_BASE')
        a('v_mov_b32 v2, s90')
        a('v_mov_b32 v3, s92')
        a('v_mov_b32 v4, s86')
        a('v_mov_b32 v5, s88')
        a('v_mov_b32 v6, s95')
        a('v_mov_b32 v7, s84')
        a('v_mov_b32 v8, s96')
        a('v_mov_b32 v9, s98')
        a('v_mov_b32 v10, 0')
        a('s_mov_b64 exec, 1')
        a('buffer_store_dwordx4 v[2:5], v10, s[60:63], s94 offen')
        a('buffer_store_dwordx4 v[6:9], v10, s[60:63], s94 offen offset:16')
    a('s_endpgm')

def mark(a, k):
    if STAMP:
        r = (86, 88, 96, 98)[k]
        a(f's_memrealtime s[{r}:{r + 1}]')
        a('s_waitcnt lgkmcnt(0)')

def prologue(a):
    if STAMP:
        a('s_memrealtime s[90:91]')
        a('s_memtime s[84:85]')
        a('s_waitcnt lgkmcnt(0)')
        a('s_mov_b32 s95, s84')
        for r in (86, 88, 96, 98): a(f's_mov_b32 s{r}, s90')
    a('s_load_dwordx16 s[4:19], s[0:1], 0')
    a('s_load_dwordx8 s[20:27], s[0:1], 64')
    a('s_load_dwordx2 s[28:29], s[0:1], 96')
    a('v_lshrrev_b32 v1, 6, v0')
    a('v_and_b32 v0, 63, v0')
    a('v_readfirstlane_b32 s3, v1')
    a('s_waitcnt lgkmcnt(0)')
    srd(a, SRD_WS, 28, WS_BYTES)

WS_BYTES = 0x1200000
def srd(a, dst, ptr, size):
    a(f's_mov_b64 s[{dst}:{dst + 1}], s[{ptr}:{ptr + 1}]')
    a(f's_mov_b32 s{dst + 2}, {size}')
    a(f's_mov_b32 s{dst + 3}, 0x20000')
SRD_WS = 60

def cmul(a, dr, di, ar, ai, br, bi):
    a(f'v_mul_f32 v{dr}, v{ar}, v{br}')
    a(f'v_mul_f32 v{di}, v{ar}, v{bi}')
    a(f'v_fma_f32 v{dr}, -v{ai}, v{bi}, v{dr}')
    a(f'v_fmac_f32 v{di}, v{ai}, v{br}')

LOG2E = math.log2(math.e)
C_HI = math.floor(LOG2E * 2**15) / 2**15
K2 = math.log(2) * (LOG2E - C_HI)

def exp_bf16(a, dst, x, t0, t1):
    a(f'v_mul_f32 v{t0}, {hexf(C_HI)}, v{x}')
    a(f'v_mul_f32 v{t1}, {hexf(K2)}, v{x}')
    a(f'v_exp_f32 v{t0}, v{t0}')
    a(f'v_fma_f32 v{t0}, v{t0}, v{t1}, v{t0}')
    a(f'v_cvt_pk_bf16_f32 v{t0}, v{t0}, v{t0}')
    a(f'v_lshlrev_b32 v{dst}, 16, v{t0}')

def kgen(a):
    a.comment('---------------- K generation ----------------')
    a('s_lshr_b32 s41, s3, 1')
    a('s_lshl_b32 s42, s40, 1')
    a('s_add_u32 s42, s42, s41')
    a('s_and_b32 s43, s3, 1')
    a('s_lshl_b32 s44, s42, 8')
    a('s_lshl_b32 s45, s43, 7')
    a('s_add_u32 s44, s44, s45')
    a('v_lshlrev_b32 v2, 1, v0')
    a('v_add_u32 v2, s44, v2')
    a('s_lshl_b32 s45, s42, 1')
    a('v_mov_b32 v3, s45')
    for k, p in enumerate((6, 8, 10, 12)): srd(a, 64 + 4 * k, p, 640 * 128 * 2)
    srd(a, 80, 14, 640 * 2)
    srd(a, 56, 16, 640 * 2)
    a('buffer_load_ushort v4, v2, s[64:67], 0 offen')
    a('buffer_load_ushort v5, v2, s[68:71], 0 offen')
    a('buffer_load_ushort v6, v2, s[72:75], 0 offen')
    a('buffer_load_ushort v7, v2, s[76:79], 0 offen')
    a('buffer_load_ushort v8, v3, s[80:83], 0 offen')
    a('buffer_load_ushort v108, v3, s[56:59], 0 offen')
    a('s_lshl_b32 s46, s3, 13')
    a('v_lshlrev_b32 v9, 2, v0')
    a('v_add_u32 v9, s46, v9')
    AW = 48
    for r in range(16):
        if r == 0: a(f'v_mov_b32 v{AW}, v9')
        else: a(f'v_xor_b32 v{AW + r}, {r * 0x110}, v9')
    a('v_and_b32 v10, 15, v0')
    a('v_lshrrev_b32 v11, 4, v0')
    a('v_xor_b32 v11, v11, v10')
    a('v_lshlrev_b32 v11, 4, v11')
    a('v_lshl_add_u32 v11, v10, 8, v11')
    a('v_add_u32 v11, s46, v11')
    AR = 44
    for ks in range(4):
        a(f'v_xor_b32 v{AR + ks}, {ks * 64}, v11')
    a('s_waitcnt vmcnt(0)')
    mark(a, 0)
    for r in (4, 5, 6, 7, 8):
        a(f'v_lshlrev_b32 v{r}, 16, v{r}')
    exp_bf16(a, 12, 8, 10, 11)
    exp_bf16(a, 13, 4, 10, 11)
    a('v_mul_f32 v13, v13, v12')
    a(f'v_mul_f32 v13, {hexf(-LOG2E)}, v13')
    a('v_mul_f32 v5, v5, v12')
    a(f'v_mul_f32 v5, {hexf(1.0 / (2 * math.pi))}, v5')
    a('v_add_f32 v12, v12, v12')
    P0, P1 = 34, 36
    a(f'v_mul_f32 v{P0}, v6, v12')
    a(f'v_mul_f32 v{P0 + 1}, v7, v12')
    Z = lambda f: 14 + 2 * f
    Z8, Z128 = 30, 32
    for (dst, p) in ((Z(1), 1.0), (Z8, 8.0), (Z128, 128.0)):
        a(f'v_mul_f32 v10, {hexf(p)}, v13')
        a(f'v_mul_f32 v11, {hexf(p)}, v5')
        a('v_exp_f32 v10, v10')
        a('v_fract_f32 v11, v11')
        a(f'v_cos_f32 v{dst}, v11')
        a(f'v_sin_f32 v{dst + 1}, v11')
        a(f'v_mul_f32 v{dst}, v{dst}, v10')
        a(f'v_mul_f32 v{dst + 1}, v{dst + 1}, v10')
    LA, LB = 38, 40
    a('v_mov_b32 v42, 0x80003f80')
    a(f'ds_write_b32 v{AW + 0}, v42')
    a(f'v_cvt_pk_bf16_f32 v43, v{Z8}, -v{Z8 + 1}')
    a(f'ds_write_b32 v{AW + 1}, v43')
    cur = Z8
    tmpk = [42, 43]
    for b in range(2, 16):
        nxt = LA if (b % 2 == 0) else LB
        cmul(a, nxt, nxt + 1, cur, cur + 1, Z8, Z8 + 1)
        t = tmpk[b % 2]
        a(f'v_cvt_pk_bf16_f32 v{t}, v{nxt}, -v{nxt + 1}')
        a(f'ds_write_b32 v{AW + b}, v{t}')
        cur = nxt
    for f in range(2, 8):
        cmul(a, Z(f), Z(f) + 1, Z(f - 1), Z(f - 1) + 1, Z(1), Z(1) + 1)
    HT = 38
    cnt = [0]
    def emit_row(row, pr, f):
        t = tmpk[cnt[0] % 2]
        if f == 0:
            a(f'v_cvt_pk_bf16_f32 v{t}, v{pr}, v{pr + 1}')
        else:
            h = HT + 2 * (cnt[0] % 2)
            cmul(a, h, h + 1, pr, pr + 1, Z(f), Z(f) + 1)
            a(f'v_cvt_pk_bf16_f32 v{t}, v{h}, v{h + 1}')
        a(f'ds_write_b32 v{AW + row}, v{t} offset:4096')
        cnt[0] += 1
    def step_P(cur, nxt):
        cmul(a, nxt, nxt + 1, cur, cur + 1, Z128, Z128 + 1)
    BF, AF = 64, 80
    DT = [96, 100, 104]
    def read_frags(dst, off):
        for ks in range(4):
            a(f'ds_read_b128 v[{dst + 4 * ks}:{dst + 4 * ks + 3}], v{AR + ks} offset:{off}')
    def mfmas(mt):
        for ks in range(4):
            c = '0' if ks == 0 else f'v[{DT[mt]}:{DT[mt] + 3}]'
            a(f'v_mfma_f32_16x16x32_bf16 v[{DT[mt]}:{DT[mt] + 3}], v[{AF + 4 * ks}:{AF + 4 * ks + 3}], v[{BF + 4 * ks}:{BF + 4 * ks + 3}], {c}')
    read_frags(BF, 0)
    for f in range(8): emit_row(f, P0, f)
    step_P(P0, P1)
    for f in range(8): emit_row(8 + f, P1, f)
    read_frags(AF, 4096)
    step_P(P1, P0)
    a('s_waitcnt lgkmcnt(0)')
    mfmas(0)
    for fp in range(4): emit_row(fp, P0, 2 * fp)
    step_P(P0, P1)
    for fp in range(4): emit_row(4 + fp, P1, 2 * fp)
    cur, oth = P1, P0
    for aa in range(4):
        step_P(cur, oth); cur, oth = oth, cur
        for fpp in range(2): emit_row(8 + 2 * aa + fpp, cur, 4 * fpp)
    read_frags(AF, 4096)
    step_P(cur, oth); cur, oth = oth, cur
    a('s_waitcnt lgkmcnt(0)')
    mfmas(1)
    for aa in range(9):
        emit_row(aa, cur, 0)
        if aa < 8:
            step_P(cur, oth); cur, oth = oth, cur
    read_frags(AF, 4096)
    a('s_waitcnt lgkmcnt(0)')
    mfmas(2)
    mark(a, 1)
    a('v_and_b32 v10, 15, v0')
    a('v_lshrrev_b32 v11, 4, v0')
    a('v_lshrrev_b32 v2, 1, v11')
    a('v_lshlrev_b32 v2, 9, v2')
    a('v_lshl_add_u32 v2, v10, 5, v2')
    a('v_and_b32 v3, 1, v11')
    a('v_lshl_add_u32 v2, v3, 4, v2')
    a('v_add_u32 v2, s46, v2')
    a(f'ds_write_b128 v2, v[{DT[0]}:{DT[0] + 3}]')
    a('v_lshlrev_b32 v2, 8, v11')
    a('v_add_u32 v2, 1024, v2')
    a('v_add_u32 v2, s46, v2')
    a('v_lshrrev_b32 v3, 1, v11')
    a('v_sub_u32 v4, 4, v3')
    a('v_lshlrev_b32 v4, v4, v10')
    a('v_add_u32 v2, v2, v4')
    a('v_mul_u32_u24 v3, 120, v3')
    a('v_add3_u32 v3, v2, v3, 8')
    a(f'ds_write_b64 v2, v[{DT[1]}:{DT[1] + 1}]')
    a(f'ds_write_b64 v3, v[{DT[1] + 2}:{DT[1] + 3}]')
    a('v_lshlrev_b32 v2, 8, v11')
    a('v_lshl_add_u32 v2, v10, 2, v2')
    a('v_add_u32 v2, s46, v2')
    for i in range(4):
        a(f'ds_write_b32 v2, v{DT[2] + i} offset:{2048 + 64 * i}')
    a('s_waitcnt lgkmcnt(0)')
    a('s_barrier')
    mark(a, 2)
    a('s_lshr_b32 s47, s3, 1')
    a('s_lshl_b32 s47, s47, 14')
    a('s_lshl_b32 s48, s42, 12')
    a(f's_add_u32 s50, s48, {OFF_KR}')
    a('s_cmp_eq_u32 s43, 1')
    a('s_cbranch_scc1 L_kg_h1')
    a('v_lshlrev_b32 v2, 5, v0')
    a('v_lshlrev_b32 v3, 4, v0')
    a('v_add_u32 v3, 512, v3')
    a('v_cmp_gt_u32 vcc, 32, v0')
    a('v_cndmask_b32 v2, v3, v2, vcc')
    a('v_add_u32 v2, s47, v2')
    a('v_lshlrev_b32 v3, 3, v0')
    a('v_add_u32 v3, s47, v3')
    a('ds_read_b128 v[16:19], v2')
    a('ds_read_b128 v[20:23], v2 offset:16')
    a('ds_read_b128 v[24:27], v2 offset:8192')
    a('ds_read_b128 v[28:31], v2 offset:8208')
    a('ds_read_b64 v[32:33], v3 offset:1536')
    a('ds_read_b32 v34, v3 offset:1544')
    a('ds_read_b64 v[36:37], v3 offset:9728')
    a('ds_read_b32 v38, v3 offset:9736')
    a('v_lshlrev_b32 v4, 4, v0')
    a('v_sub_u32 v4, 4080, v4')
    a('s_waitcnt lgkmcnt(4)')
    for j in range(8): a(f'v_add_f32 v{16 + j}, v{16 + j}, v{24 + j}')
    a('v_lshlrev_b32 v108, 16, v108')
    a('v_cmp_eq_u32 vcc, 0, v0')
    a('v_cndmask_b32 v108, 0, v108, vcc')
    a('v_add_f32 v16, v16, v108')
    a('s_mov_b64 s[52:53], exec')
    a('s_mov_b32 exec_hi, 0')
    for q in range(4): a(f'v_cvt_pk_bf16_f32 v{40 + q}, v{16 + 7 - 2 * q}, v{16 + 6 - 2 * q}')
    a('s_mov_b32 exec_lo, 0')
    a('s_mov_b32 exec_hi, -1')
    for q, (x, y) in enumerate(((4, 3), (2, 2), (2, 1), (0, 0))):
        a(f'v_cvt_pk_bf16_f32 v{40 + q}, v{16 + x}, v{16 + y}')
    a('s_mov_b64 exec, s[52:53]')
    a('buffer_store_dwordx4 v[40:43], v4, s[60:63], s50 offen')
    a('s_waitcnt lgkmcnt(0)')
    a('v_add_f32 v32, v32, v36')
    a('v_add_f32 v33, v33, v37')
    a('v_add_f32 v34, v34, v38')
    for q, (x, y) in enumerate(((2, 2), (1, 1), (1, 0), (0, 0))):
        a(f'v_cvt_pk_bf16_f32 v{44 + q}, v{32 + x}, v{32 + y}')
    a('v_subrev_u32 v4, 1024, v4')
    a('buffer_store_dwordx4 v[44:47], v4, s[60:63], s50 offen')
    end(a)
    a.label('L_kg_h1')
    a('v_lshlrev_b32 v2, 2, v0')
    a('v_add_u32 v2, s47, v2')
    a('v_add_u32 v2, 2048, v2')
    a('v_add_u32 v3, 8192, v2')
    a('ds_read2_b32 v[16:17], v2 offset0:0 offset1:1')
    a('ds_read2_b32 v[18:19], v2 offset0:64 offset1:65')
    a('ds_read2_b32 v[20:21], v3 offset0:0 offset1:1')
    a('ds_read2_b32 v[22:23], v3 offset0:64 offset1:65')
    a('v_lshlrev_b32 v4, 4, v0')
    a('v_sub_u32 v4, 2032, v4')
    a('v_and_b32 v5, 1, v0')
    a('v_cmp_eq_u32 vcc, 0, v5')
    a('s_waitcnt lgkmcnt(0)')
    for j in range(4): a(f'v_add_f32 v{16 + j}, v{16 + j}, v{20 + j}')
    for r in range(2):
        v0_, v1_ = 16 + 2 * r, 17 + 2 * r
        a(f'v_cndmask_b32 v24, v{v1_}, v{v0_}, vcc')
        b = 40 + 4 * r
        a(f'v_cvt_pk_bf16_f32 v{b}, v{v1_}, v{v1_}')
        a(f'v_cvt_pk_bf16_f32 v{b + 1}, v{v1_}, v24')
        a(f'v_cvt_pk_bf16_f32 v{b + 2}, v{v0_}, v{v0_}')
        a(f'v_mov_b32 v{b + 3}, v{b + 2}')
        if r == 1: a('v_subrev_u32 v4, 1024, v4')
        a(f'buffer_store_dwordx4 v[{b}:{b + 3}], v4, s[60:63], s50 offen')
    end(a)

SEL_LO, SEL_HI = 0x05040100, 0x07060302

def ttile_finish(a, rowshift, nst):
    mark(a, 0)
    a('v_and_b32 v2, 7, v0')
    a('v_lshrrev_b32 v3, 3, v0')
    a('v_xor_b32 v4, v2, v3')
    a('v_lshlrev_b32 v4, 4, v4')
    a('v_lshl_add_u32 v4, v2, 10, v4')
    a('v_add_u32 v4, s46, v4')
    for j in range(8):
        a(f'ds_write_b128 v4, v[{64 + 4 * j}:{67 + 4 * j}] offset:{128 * j}')
    a('v_lshlrev_b32 v6, 7, v3')
    a('v_lshl_add_u32 v6, v2, 4, v6')
    a('v_add_u32 v6, s46, v6')
    a(f'v_lshlrev_b32 v7, {rowshift}, v3')
    a('v_lshl_add_u32 v7, v2, 4, v7')
    a('v_add_u32 v7, v5, v7')
    for t in range(nst):
        if t == 0: a('v_mov_b32 v8, v6')
        else: a(f'v_xor_b32 v8, {t << 4}, v6')
        a(f'ds_read_b128 v[{16 + 4 * t}:{19 + 4 * t}], v8 offset:{1024 * t}')
    mark(a, 1)
    for t in range(nst):
        a(f's_waitcnt lgkmcnt({nst - 1 - t})')
        a(f'buffer_store_dwordx4 v[{16 + 4 * t}:{19 + 4 * t}], v7, s[60:63], s50 offen')
        if t < nst - 1: a(f'v_add_u32 v7, {8 << rowshift}, v7')
    end(a)

def ttile(a):
    a.comment('---------------- transposition tiles ----------------')
    a('s_lshl_b32 s41, s40, 2')
    a('s_add_u32 s41, s41, s3')
    a('s_lshl_b32 s46, s3, 13')
    a(f's_mov_b32 s54, {SEL_LO}')
    a(f's_mov_b32 s55, {SEL_HI}')
    a('v_and_b32 v2, 7, v0')
    a('v_lshrrev_b32 v3, 3, v0')
    a('s_cmp_ge_u32 s41, 320')
    a('s_cbranch_scc1 L_tt_w')
    a('s_mul_i32 s42, s41, 6554')
    a('s_lshr_b32 s42, s42, 16')
    a('s_mul_i32 s43, s42, 10')
    a('s_sub_u32 s43, s41, s43')
    a('s_mul_i32 s44, s42, 81920')
    a('s_lshl_b32 s45, s43, 7')
    a('s_add_u32 s44, s44, s45')
    a('v_mul_u32_u24 v4, 10240, v3')
    a('v_lshl_add_u32 v4, v2, 4, v4')
    a('v_add_u32 v4, s44, v4')
    for t in range(8):
        if t == 0: srd(a, 64, 4, 2048 * 640 * 2)
        a(f'buffer_load_dwordx4 v[{16 + 4 * t}:{19 + 4 * t}], v4, s[64:67], 0 offen' + (f' offset:{1280 * t}' if t < 4 else ''))
        if t == 3: a('v_add_u32 v4, 5120, v4')
        if t >= 4 and t < 7: a('v_add_u32 v4, 1280, v4')
    a(f's_mov_b32 s50, {OFF_UT}')
    a('s_lshl_b32 s44, s43, 18')
    a('s_lshl_b32 s45, s42, 7')
    a('s_add_u32 s44, s44, s45')
    a('v_mov_b32 v5, s44')
    for dw in range(4):
        a(f's_waitcnt vmcnt({6 - 2 * dw})')
        for j in range(8):
            sel = 's54' if j % 2 == 0 else 's55'
            a(f'v_perm_b32 v{64 + 4 * j + dw}, v{16 + 4 * (2 * dw + 1) + (j >> 1)}, v{16 + 4 * (2 * dw) + (j >> 1)}, {sel}')
    ttile_finish(a, 12, 8)
    a.label('L_tt_w')
    a('s_sub_u32 s41, s41, 320')
    a('s_mul_i32 s42, s41, 10923')
    a('s_lshr_b32 s42, s42, 16')
    a('s_mul_i32 s43, s42, 6')
    a('s_sub_u32 s43, s41, s43')
    a('s_mul_i32 s44, s42, 20544')
    a('s_lshl_b32 s45, s43, 7')
    a('s_add_u32 s44, s44, s45')
    a('v_mul_u32_u24 v4, 2568, v3')
    a('v_lshl_add_u32 v4, v2, 4, v4')
    a('v_add_u32 v4, s44, v4')
    a(f's_mov_b32 s50, {OFF_WT}')
    srd(a, 64, 20, 2048 * 321 * 2)
    srd(a, 68, 22, 2048 * 321 * 2)
    a('s_lshl_b32 s44, s43, 19')
    a('s_lshl_b32 s45, s42, 7')
    a('s_add_u32 s44, s44, s45')
    a('v_mov_b32 v5, s44')
    a('s_cmp_eq_u32 s43, 5')
    a('s_cbranch_scc1 L_tt_w5')
    for t in range(4):
        a(f'buffer_load_dwordx4 v[{16 + 4 * t}:{19 + 4 * t}], v4, s[64:67], 0 offen offset:{642 * t}')
        a(f'buffer_load_dwordx4 v[{32 + 4 * t}:{35 + 4 * t}], v4, s[68:71], 0 offen offset:{642 * t}')
    for t in range(4):
        a(f's_waitcnt vmcnt({6 - 2 * t})')
        for j in range(8):
            sel = 's54' if j % 2 == 0 else 's55'
            a(f'v_perm_b32 v{64 + 4 * j + t}, v{32 + 4 * t + (j >> 1)}, v{16 + 4 * t + (j >> 1)}, {sel}')
    ttile_finish(a, 13, 8)
    a.label('L_tt_w5')
    a('s_mul_i32 s44, s42, 20544')
    a('s_add_u32 s44, s44, 640')
    a('v_mul_u32_u24 v4, 2568, v3')
    a('v_add_u32 v4, s44, v4')
    for t in range(4):
        a(f'buffer_load_ushort v{16 + 4 * t}, v4, s[64:67], 0 offen offset:{642 * t}')
        a(f'buffer_load_ushort v{32 + 4 * t}, v4, s[68:71], 0 offen offset:{642 * t}')
    a('s_waitcnt vmcnt(0)')
    for t in range(4):
        a(f'v_perm_b32 v{64 + t}, v{32 + 4 * t}, v{16 + 4 * t}, s54')
    for j in range(1, 8):
        for t in range(4): a(f'v_mov_b32 v{64 + 4 * j + t}, 0')
    ttile_finish(a, 13, 1)

def brow(a):
    a.comment('---------------- row DFT ----------------')
    XROW = 0
    TAB = 10240
    PL = 23552
    a('s_lshr_b32 s41, s40, 2')
    a('s_and_b32 s42, s40, 3')
    a('s_lshr_b32 s43, s42, 1')
    a('s_lshl_b32 s43, s43, 4')
    a('s_and_b32 s44, s42, 1')
    a('s_lshl_b32 s44, s44, 2')
    a('s_add_u32 s43, s43, s44')
    a('s_lshr_b32 s44, s3, 1')
    a('s_lshl_b32 s44, s44, 3')
    a('s_add_u32 s43, s43, s44')
    a('s_and_b32 s44, s3, 1')
    a('s_lshl_b32 s44, s44, 1')
    a('s_add_u32 s43, s43, s44')
    a('s_lshl_b32 s43, s43, 6')
    a('s_add_u32 s43, s43, s41')
    a('s_mul_i32 s44, s43, 1280')
    a('s_getpc_b64 s[30:31]')
    a.label('L_br_pc')
    a('s_add_u32 s30, s30, T_P1 - L_br_pc')
    a('s_addc_u32 s31, s31, 0')
    srd(a, 64, 18, 2048 * 640 * 2)
    srd(a, 68, 30, 13312)
    a('v_lshlrev_b32 v2, 4, v0')
    a('v_add_u32 v3, s44, v2')
    a('v_add_u32 v4, 1024, v3')
    a('v_cmp_le_u32 vcc, 16, v0')
    a(f'v_mov_b32 v5, {64 * 1280 - 1280}')
    a('v_cndmask_b32 v5, 0, v5, vcc')
    a('v_add_u32 v4, v4, v5')
    a(f'v_add_u32 v6, {2048 + 64 * 1280 - 1280}, v3')
    a('s_mul_i32 s45, s3, 2560')
    a('s_mov_b32 m0, s45')
    a('buffer_load_dwordx4 v3, s[64:67], 0 offen lds')
    a('s_add_u32 m0, s45, 1024')
    a('buffer_load_dwordx4 v4, s[64:67], 0 offen lds')
    a('s_add_u32 m0, s45, 2048')
    a('s_mov_b32 exec_hi, 0')
    a('buffer_load_dwordx4 v6, s[64:67], 0 offen lds')
    a('s_mov_b32 exec_hi, -1')
    a('s_lshl_b32 s46, s3, 10')
    a('v_add_u32 v7, s46, v2')
    a(f's_add_u32 s47, s46, {TAB}')
    for k in range(3):
        a(f's_add_u32 m0, s47, {4096 * k}')
        a('buffer_load_dwordx4 v7, s[68:71], 0 offen lds')
        if k < 2: a('v_add_u32 v7, 4096, v7')
    a('s_cmp_lg_u32 s3, 0')
    a('s_cbranch_scc1 L_br_t')
    a('v_add_u32 v7, 4096, v7')
    a(f's_mov_b32 m0, {TAB + 12288}')
    a('buffer_load_dwordx4 v7, s[68:71], 0 offen lds')
    a.label('L_br_t')
    a('v_and_b32 v8, 3, v0')
    a('v_bfe_u32 v9, v0, 4, 1')
    a('v_lshl_add_u32 v8, v9, 2, v8')
    a('v_cmp_le_u32 vcc, 5, v8')
    a('v_subrev_u32 v9, 5, v8')
    a('v_cndmask_b32 v8, v8, v9, vcc')
    a('v_bfe_u32 v9, v0, 2, 2')
    a('v_lshrrev_b32 v10, 5, v0')
    a('v_lshl_add_u32 v9, v10, 3, v9')
    a('v_mul_u32_u24 v9, 40, v9')
    a('v_lshl_add_u32 v8, v8, 3, v9')
    a('v_add_u32 v8, s45, v8')
    a(f'v_add_u32 v9, {TAB}, v2')
    a('s_waitcnt vmcnt(0)')
    mark(a, 0)
    a('s_barrier')
    mark(a, 1)
    FC, FS, TC, TS, GG = 16, 24, 32, 44, 56
    XA = 68
    for r in range(2):
        for t in range(2):
            for hh in range(2):
                d = XA + 8 * r + 4 * t + 2 * hh
                a(f'ds_read_b64_tr_b16 v[{d}:{d + 1}], v8 offset:{1280 * r + 640 * t + 160 * hh}')
    for k in range(4): a(f'ds_read_b128 v[{FC + 4 * k}:{FC + 4 * k + 3}], v9 offset:{1024 * k}')
    for k in range(6): a(f'ds_read_b128 v[{TC + 4 * k}:{TC + 4 * k + 3}], v9 offset:{4096 + 1024 * k}')
    for k in range(3): a(f'ds_read_b128 v[{GG + 4 * k}:{GG + 4 * k + 3}], v9 offset:{10240 + 1024 * k}')
    YR = [84, 116]; YI = [100, 132]
    a('s_waitcnt lgkmcnt(9)')
    for r in range(2):
        for (Y, F) in ((YR[r], FC), (YI[r], FS)):
            for t in range(2):
                c = '0' if t == 0 else f'v[{Y}:{Y + 15}]'
                a(f'v_mfma_f32_32x32x16_bf16 v[{Y}:{Y + 15}], v[{XA + 8 * r + 4 * t}:{XA + 8 * r + 4 * t + 3}], v[{F + 4 * t}:{F + 4 * t + 3}], {c}')
    a('s_waitcnt lgkmcnt(0)')
    TP = [68, 148]
    D2 = [84, 116]
    for r in range(2):
        for i in range(12):
            a(f'v_mul_f32 v2, v{YR[r] + i}, v{TC + i}')
            a(f'v_mul_f32 v3, v{YI[r] + i}, v{TC + i}')
            a(f'v_fmac_f32 v2, v{YI[r] + i}, v{TS + i}')
            a(f'v_fma_f32 v3, -v{YR[r] + i}, v{TS + i}, v3')
            a(f'v_cvt_pk_bf16_f32 v{TP[r] + i}, v2, v3')
        for tau in range(3):
            c = '0' if tau == 0 else f'v[{D2[r]}:{D2[r] + 15}]'
            a(f'v_mfma_f32_32x32x16_bf16 v[{D2[r]}:{D2[r] + 15}], v[{GG + 4 * tau}:{GG + 4 * tau + 3}], v[{TP[r] + 4 * tau}:{TP[r] + 4 * tau + 3}], {c}')
    a('v_and_b32 v4, 31, v0')
    a('v_lshlrev_b32 v4, 3, v4')
    a('v_lshrrev_b32 v5, 5, v0')
    a('v_lshl_add_u32 v4, v5, 9, v4')
    a('s_mul_i32 s46, s3, 3072')
    a(f's_add_u32 s46, s46, {PL}')
    a('v_add_u32 v4, s46, v4')
    for i in range(12):
        a(f'v_cvt_pk_bf16_f32 v{16 + i}, v{D2[0] + i}, v{D2[1] + i}')
    for i in range(0, 12, 2):
        a(f'ds_write_b64 v4, v[{16 + i}:{17 + i}] offset:{256 * ((i & 3) >> 1) + 1024 * (i >> 2)}')
    a('s_waitcnt lgkmcnt(0)')
    mark(a, 2)
    a('s_barrier')
    mark(a, 3)
    a('s_lshl_b32 s46, s3, 6')
    a('v_add_u32 v2, s46, v0')
    a('v_lshlrev_b32 v3, 2, v2')
    a(f'v_add_u32 v3, {PL}, v3')
    a('s_lshr_b32 s47, s41, 1')
    a('s_and_b32 s47, s47, 15')
    a('s_lshl_b32 s48, s42, 3')
    a('v_and_b32 v4, 7, v2')
    a('v_add_u32 v4, s48, v4')
    a('v_xor_b32 v4, s47, v4')
    a('v_lshlrev_b32 v4, 4, v4')
    a('v_lshrrev_b32 v5, 3, v2')
    a('v_lshl_add_u32 v4, v5, 15, v4')
    a('s_lshl_b32 s48, s41, 9')
    a('v_add_u32 v4, s48, v4')
    a(f's_mov_b32 s50, {OFF_X1}')
    for t in range(3):
        for pl in range(2):
            a(f'ds_read2st64_b32 v[{16 + 4 * t + 2 * pl}:{17 + 4 * t + 2 * pl}], v3 offset0:{4 * t + 24 * pl} offset1:{4 * t + 24 * pl + 12}')
    for t in range(3):
        a(f's_waitcnt lgkmcnt({4 - 2 * t})')
        if t == 2:
            a('v_cmp_gt_u32 vcc, 136, v2')
            a('s_and_saveexec_b64 s[52:53], vcc')
            a('s_cbranch_execz L_br_end')
        a(f'buffer_store_dwordx4 v[{16 + 4 * t}:{19 + 4 * t}], v4, s[60:63], s50 offen')
        if t < 2: a(f'v_add_u32 v4, {32 * 32768}, v4')
    a.label('L_br_end')
    end(a)

def kernel_p1(a, enable=(1, 1, 1)):
    a('.set STAMP_BASE, 0')
    a('.p2align 8')
    a.label('k1_kernel')
    a(f's_cmp_ge_u32 s2, {N_KGEN + N_BROW + N_TILE}')
    a('s_cbranch_scc1 L_k1_end')
    prologue(a)
    a(f's_cmp_lt_u32 s2, {N_KGEN}')
    a('s_cbranch_scc1 L_k1_kgen')
    a(f's_cmp_lt_u32 s2, {N_KGEN + N_BROW}')
    a('s_cbranch_scc1 L_k1_brow')
    a(f's_sub_u32 s40, s2, {N_KGEN + N_BROW}')
    if enable[2]: ttile(a)
    else: a('s_endpgm')
    a.label('L_k1_brow')
    a(f's_sub_u32 s40, s2, {N_KGEN}')
    if enable[1]: brow(a)
    else: a('s_endpgm')
    a.label('L_k1_kgen')
    a('s_mov_b32 s40, s2')
    if enable[0]: kgen(a)
    else: a('s_endpgm')
    a.label('L_k1_end')
    a('s_endpgm')
```

```python
from asmlib import Asm
from model import OFF_X1, OFF_WT, OFF_UT, OFF_KR, OFF_Z, OFF_YT
from gen_p1 import prologue, end, mark, srd, hexf

N_CONV = 160
N_COL = 81
NWG = N_CONV + N_COL
P2_LDS = 86016
VGPR = 224

def conv(a):
    a.comment('---------------- causal convolution ----------------')
    WB = 13312
    UO = 8320
    a('s_lshl_b32 s42, s40, 2')
    a('s_add_u32 s42, s42, s3')
    a(f's_mul_i32 s46, s3, {WB}')
    a('s_lshl_b32 s44, s42, 12')
    a(f's_add_u32 s47, s44, {OFF_KR}')
    a(f's_add_u32 s48, s44, {OFF_UT}')
    a('v_lshlrev_b32 v2, 4, v0')
    for c in range(2):
        for t in range(4):
            a(f's_add_u32 m0, s46, {4160 * c + 1024 * t}')
            a(f's_add_u32 s49, s47, {2 * c + 1024 * t}')
            a('buffer_load_dwordx4 v2, s[60:63], s49 offen lds')
    for t in range(4):
        a(f's_add_u32 m0, s46, {UO + 480 + 1024 * t}')
        a(f's_add_u32 s49, s48, {1024 * t}')
        a('buffer_load_dwordx4 v2, s[60:63], s49 offen lds')
    for i in range(4): a(f'v_mov_b32 v{4 + i}, 0')
    a(f'v_add_u32 v3, s46, v2')
    a('v_cmp_gt_u32 vcc, 30, v0')
    a('s_and_saveexec_b64 s[52:53], vcc')
    a(f'ds_write_b128 v3, v[4:7] offset:{UO}')
    a('s_mov_b64 exec, s[52:53]')
    a('v_and_b32 v8, 15, v0')
    a('v_lshrrev_b32 v9, 4, v0')
    VB = 10
    a(f'v_lshlrev_b32 v{VB}, 5, v8')
    a(f'v_lshl_add_u32 v{VB}, v9, 4, v{VB}')
    a(f'v_add_u32 v{VB}, s46, v{VB}')
    a(f'v_add_u32 v{VB}, {UO}, v{VB}')
    a('v_and_b32 v11, 1, v8')
    a('v_sub_u32 v11, 1, v11')
    a('v_mul_u32_u24 v12, 4158, v11')
    a('v_lshlrev_b32 v13, 1, v8')
    a('v_sub_u32 v12, v12, v13')
    a('v_lshl_add_u32 v12, v9, 4, v12')
    a('v_add_u32 v12, s46, v12')
    VA = 12
    for p in (3, 2, 1):
        a(f'v_add_u32 v{VA + p}, {4062 - 64 * (8 * (2 * p + 1) + 7)}, v12')
    a(f'v_add_u32 v{VA}, {4062 - 64 * (8 * 1 + 7)}, v12')
    MK = 16
    a('v_lshlrev_b32 v4, 3, v9')
    a('v_sub_u32 v4, v8, v4')
    a('v_add_u32 v4, 16, v4')
    for j in range(4):
        a(f'v_cmp_le_i32 vcc, {2 * j}, v4')
        a('v_mov_b32 v6, 0xffff')
        a(f'v_cndmask_b32 v5, 0, v6, vcc')
        a(f'v_cmp_le_i32 vcc, {2 * j + 1}, v4')
        a('v_mov_b32 v6, 0xffff0000')
        a(f'v_cndmask_b32 v6, 0, v6, vcc')
        a(f'v_or_b32 v{MK + j}, v5, v6')
    ACC = 20
    BUF = [(52, 84), (116, 148)]
    def reads(buf, rho):
        A, B = BUF[buf]
        out = []
        for kap in range(8):
            o = (1 - (kap & 1)) * 128 + (7 - rho) * 16
            out.append(f'ds_read2_b32 v[{A + 4 * kap}:{A + 4 * kap + 1}], v{VA + (kap >> 1)} offset0:{o} offset1:{o + 1}')
            out.append(f'ds_read2_b32 v[{A + 4 * kap + 2}:{A + 4 * kap + 3}], v{VA + (kap >> 1)} offset0:{o + 2} offset1:{o + 3}')
        for dl in range(8):
            out.append(f'ds_read_b128 v[{B + 4 * dl}:{B + 4 * dl + 3}], v{VB} offset:{512 * dl + 64 * (7 - rho)}')
        return out
    def mf(buf, first):
        A, B = BUF[buf]
        out = []
        for kap in range(8):
            for j in range(kap, 8):
                c = '0' if (first and kap == 0) else f'v[{ACC + 4 * j}:{ACC + 4 * j + 3}]'
                out.append(f'v_mfma_f32_16x16x32_bf16 v[{ACC + 4 * j}:{ACC + 4 * j + 3}], v[{A + 4 * kap}:{A + 4 * kap + 3}], v[{B + 4 * (j - kap)}:{B + 4 * (j - kap) + 3}], {c}')
        return out
    a('s_waitcnt vmcnt(0) lgkmcnt(0)')
    mark(a, 0)
    for r in reads(0, 0): a(r)
    a('s_waitcnt lgkmcnt(0)')
    A0 = BUF[0][0]
    for j in range(4): a(f'v_and_b32 v{A0 + j}, v{A0 + j}, v{MK + j}')
    for rho in range(8):
        m = mf(rho & 1, rho == 0)
        nx = reads((rho + 1) & 1, rho + 1) if rho < 7 else []
        k = 0
        for i, ins in enumerate(m):
            a(ins)
            if k < len(nx) and i >= 1:
                a(nx[k]); k += 1
        if rho < 7: a('s_waitcnt lgkmcnt(0)')
    mark(a, 1)
    a('v_lshlrev_b32 v4, 5, v8')
    a('v_lshl_add_u32 v4, v9, 3, v4')
    a(f's_add_u32 s49, s44, {OFF_YT}')
    for j in range(8):
        a(f'v_cvt_pk_bf16_f32 v{52 + 2 * j}, v{ACC + 4 * j}, v{ACC + 4 * j + 1}')
        a(f'v_cvt_pk_bf16_f32 v{53 + 2 * j}, v{ACC + 4 * j + 2}, v{ACC + 4 * j + 3}')
        a(f'buffer_store_dwordx2 v[{52 + 2 * j}:{53 + 2 * j}], v4, s[60:63], s49 offen offset:{512 * j}')
    end(a)

def col(a):
    a.comment('---------------- column FFT * W * inverse column FFT ----------------')
    TAB = 32768
    a('s_lshl_b32 s41, s40, 2')
    a('s_add_u32 s41, s41, s3')
    a('s_getpc_b64 s[30:31]')
    a.label('L_col_pc')
    a('s_add_u32 s30, s30, T_P2 - L_col_pc')
    a('s_addc_u32 s31, s31, 0')
    srd(a, 68, 30, 24576)
    a('v_lshlrev_b32 v2, 4, v0')
    a('s_lshl_b32 s42, s40, 15')
    a('s_lshl_b32 s43, s3, 13')
    a('s_add_u32 s44, s42, s43')
    a(f's_add_u32 s44, s44, {OFF_X1}')
    for k in range(8):
        a(f's_add_u32 m0, s43, {1024 * k}')
        a('buffer_load_dwordx4 v2, s[60:63], s44 offen lds')
        if k < 7: a('s_add_u32 s44, s44, 1024')
    a('s_mul_i32 s45, s3, 6144')
    for k in range(6):
        a(f's_add_u32 m0, s45, {TAB + 1024 * k}')
        a(f's_add_u32 s49, s45, {1024 * k}')
        a('buffer_load_dwordx4 v2, s[68:71], s49 offen lds')
    WR = 56
    a('v_and_b32 v3, 31, v0')
    a('v_lshrrev_b32 v4, 5, v0')
    a('v_lshlrev_b32 v5, 2, v3')
    a('v_lshl_add_u32 v5, v4, 9, v5')
    a('s_lshl_b32 s46, s41, 13')
    a(f's_add_u32 s46, s46, {OFF_WT}')
    a('s_add_u32 s47, s46, 4096')
    for h in range(2):
        for i in range(16):
            a(f'buffer_load_dword v{WR + 16 * h + i}, v5, s[60:63], s{46 + h} offen offset:{128 * ((i & 3) + 8 * (i >> 2))}')
    a('v_lshlrev_b32 v6, 3, v4')
    a('s_lshl_b32 s48, s3, 1')
    a('v_add_u32 v6, s48, v6')
    a('v_and_b32 v7, 15, v3')
    a('v_xor_b32 v6, v6, v7')
    a('v_lshlrev_b32 v6, 4, v6')
    a('v_lshl_add_u32 v6, v3, 10, v6')
    ADR = 200
    for pi in range(2):
        for t in range(2):
            for ri in range(2):
                k = ((16 * t + ri) << 4) | (pi << 9)
                if k == 0: a(f'v_mov_b32 v{ADR}, v6')
                else: a(f'v_xor_b32 v{ADR + pi * 4 + t * 2 + ri}, {k}, v6')
    a(f'v_add_u32 v7, {TAB}, v2')
    a('s_waitcnt vmcnt(32)')
    a('s_barrier')
    mark(a, 0)
    C, S, NS, OC, OS, ONS = 8, 16, 24, 32, 40, 48
    XF = 88
    def rd(dst, off): a(f'ds_read_b128 v[{dst}:{dst + 3}], v7 offset:{off}')
    for k in range(8): a(f'ds_read_b128 v[{XF + 4 * k}:{XF + 4 * k + 3}], v{ADR + k}')
    for t in range(2):
        rd(C + 4 * t, 1024 * t); rd(S + 4 * t, 2048 + 1024 * t)
    TW = 184
    for k in range(4): rd(TW + 4 * k, 12288 + 1024 * k)
    a('s_waitcnt lgkmcnt(4)')
    for i in range(8): a(f'v_xor_b32 v{NS + i}, 0x80008000, v{S + i}')
    a('s_barrier')
    D = [120, 136, 152, 168]
    def F(pi, t, ri): return XF + 4 * (pi * 4 + t * 2 + ri)
    def mm(d, A, B, first):
        c = '0' if first else f'v[{d}:{d + 15}]'
        a(f'v_mfma_f32_32x32x16_bf16 v[{d}:{d + 15}], v[{A}:{A + 3}], v[{B}:{B + 3}], {c}')
    def cplx(dre, dim, dataA, re, im, Cc, Sre, Sim):
        for t in range(2):
            for (d, x, y, s2) in ((dre, re, im, Sre), (dim, im, re, Sim)):
                if dataA:
                    mm(d, x(t), Cc + 4 * t, t == 0); mm(d, y(t), s2 + 4 * t, False)
                else:
                    mm(d, Cc + 4 * t, x(t), t == 0); mm(d, s2 + 4 * t, y(t), False)
    for pi in range(2):
        cplx(D[2 * pi], D[2 * pi + 1], True, lambda t: F(pi, t, 0), lambda t: F(pi, t, 1), C, S, NS)
    for t in range(2):
        rd(OC + 4 * t, 4096 + 1024 * t); rd(OS + 4 * t, 6144 + 1024 * t)
    def twp(pi, sgn):
        re, im = D[2 * pi], D[2 * pi + 1]
        for i in range(16):
            tw = TW + i
            p, m = ('', '-') if sgn > 0 else ('-', '')
            a(f'v_fma_mix_f32 v2, v{re + i}, v{tw}, 0 op_sel_hi:[0,1,0]')
            a(f'v_fma_mix_f32 v3, v{im + i}, v{tw}, 0 op_sel_hi:[0,1,0]')
            a(f'v_fma_mix_f32 v{208 + (i & 1)}, {p}v{im + i}, v{tw}, v2 op_sel:[0,1,0] op_sel_hi:[0,1,0]')
            a(f'v_fma_mix_f32 v{210 + (i & 1)}, {m}v{re + i}, v{tw}, v3 op_sel:[0,1,0] op_sel_hi:[0,1,0]')
            if i & 1:
                t = i >> 3; j = (i & 7) >> 1
                a(f'v_cvt_pk_bf16_f32 v{F(pi, t, 0) + j}, v208, v209')
                a(f'v_cvt_pk_bf16_f32 v{F(pi, t, 1) + j}, v210, v211')
    def pack(pi, re, im):
        for t in range(2):
            for j in range(4):
                a(f'v_cvt_pk_bf16_f32 v{F(pi, t, 0) + j}, v{re + 8 * t + 2 * j}, v{re + 8 * t + 2 * j + 1}')
                a(f'v_cvt_pk_bf16_f32 v{F(pi, t, 1) + j}, v{im + 8 * t + 2 * j}, v{im + 8 * t + 2 * j + 1}')
    a('s_waitcnt lgkmcnt(4)')
    twp(0, +1)
    for k in range(4): rd(TW + 4 * k, 16384 + 1024 * k)
    a('s_waitcnt lgkmcnt(0)')
    for i in range(8): a(f'v_xor_b32 v{ONS + i}, 0x80008000, v{OS + i}')
    twp(1, +1)
    cplx(D[0], D[1], False, lambda t: F(0, t, 0), lambda t: F(0, t, 1), C, S, NS)
    cplx(D[2], D[3], False, lambda t: F(1, t, 0), lambda t: F(1, t, 1), OC, OS, ONS)
    for t in range(2):
        rd(OC + 4 * t, 8192 + 1024 * t); rd(OS + 4 * t, 10240 + 1024 * t)
    for k in range(4): rd(TW + 4 * k, 12288 + 1024 * k)
    a('s_waitcnt vmcnt(0)')
    a('s_cmp_eq_u32 s41, 0')
    a('s_cbranch_scc1 L_col_half')
    a('s_cmp_lg_u32 s41, 320')
    a('s_cbranch_scc1 L_col_nohalf')
    a.label('L_col_half')
    for i in range(32):
        a(f'v_lshlrev_b32 v2, 16, v{WR + i}')
        a(f'v_and_b32 v3, 0xffff0000, v{WR + i}')
        a('v_mul_f32 v2, 0.5, v2')
        a('v_mul_f32 v3, 0.5, v3')
        a(f'v_cvt_pk_bf16_f32 v{WR + i}, v2, v3')
    a.label('L_col_nohalf')
    a('s_nop 7'); a('s_nop 7')
    Er, Ei, Or, Oi = D
    for i in range(16):
        a(f'v_add_f32 v208, v{Er + i}, v{Or + i}')
        a(f'v_sub_f32 v209, v{Er + i}, v{Or + i}')
        a(f'v_add_f32 v210, v{Ei + i}, v{Oi + i}')
        a(f'v_sub_f32 v211, v{Ei + i}, v{Oi + i}')
        a(f'v_lshlrev_b32 v212, 16, v{WR + i}')
        a(f'v_and_b32 v213, 0xffff0000, v{WR + i}')
        a(f'v_lshlrev_b32 v214, 16, v{WR + 16 + i}')
        a(f'v_and_b32 v215, 0xffff0000, v{WR + 16 + i}')
        a('v_mul_f32 v2, v208, v212')
        a('v_mul_f32 v3, v208, v213')
        a('v_mul_f32 v4, v209, v214')
        a('v_mul_f32 v5, v209, v215')
        a('v_fma_f32 v2, -v210, v213, v2')
        a('v_fmac_f32 v3, v210, v212')
        a('v_fma_f32 v4, -v211, v215, v4')
        a('v_fmac_f32 v5, v211, v214')
        a(f'v_add_f32 v{Er + i}, v2, v4')
        a(f'v_add_f32 v{Ei + i}, v3, v5')
        a(f'v_sub_f32 v{Or + i}, v2, v4')
        a(f'v_sub_f32 v{Oi + i}, v3, v5')
    pack(0, Er, Ei)
    pack(1, Or, Oi)
    a('s_waitcnt lgkmcnt(0)')
    for i in range(8): a(f'v_xor_b32 v{ONS + i}, 0x80008000, v{OS + i}')
    cplx(D[0], D[1], True, lambda t: F(0, t, 0), lambda t: F(0, t, 1), C, NS, S)
    cplx(D[2], D[3], True, lambda t: F(1, t, 0), lambda t: F(1, t, 1), OC, ONS, OS)
    twp(0, -1)
    for k in range(4): rd(TW + 4 * k, 20480 + 1024 * k)
    a('s_waitcnt lgkmcnt(0)')
    twp(1, -1)
    for pi in range(2):
        cplx(D[2 * pi], D[2 * pi + 1], False, lambda t: F(pi, t, 0), lambda t: F(pi, t, 1), C, NS, S)
    for pi in range(2):
        pack(pi, D[2 * pi], D[2 * pi + 1])
    mark(a, 1)
    for k in range(8): a(f'ds_write_b128 v{ADR + k}, v[{XF + 4 * k}:{XF + 4 * k + 3}]')
    a('s_waitcnt lgkmcnt(0)')
    a('s_barrier')
    a('v_lshlrev_b32 v2, 4, v0')
    a('v_add_u32 v3, s43, v2')
    a('s_add_u32 s44, s42, s43')
    a(f's_add_u32 s44, s44, {OFF_Z}')
    for k in range(8): a(f'ds_read_b128 v[{8 + 4 * k}:{11 + 4 * k}], v3 offset:{1024 * k}')
    for k in range(8):
        a(f's_waitcnt lgkmcnt({7 - k})')
        a(f'buffer_store_dwordx4 v[{8 + 4 * k}:{11 + 4 * k}], v2, s[60:63], s44 offen offset:{1024 * k}' if k < 4 else
          f'buffer_store_dwordx4 v[{8 + 4 * k}:{11 + 4 * k}], v2, s[60:63], s49 offen offset:{1024 * (k - 4)}')
        if k == 0: a('s_add_u32 s49, s44, 4096')
    end(a)

def kernel_p2(a, enable=(1, 1)):
    a('.set STAMP_BASE, 0x20000')
    a('.p2align 8')
    a.label('k2_kernel')
    a(f's_cmp_ge_u32 s2, {NWG}')
    a('s_cbranch_scc1 L_k2_end')
    prologue(a)
    a(f's_cmp_lt_u32 s2, {N_CONV}')
    a('s_cbranch_scc1 L_k2_conv')
    a(f's_sub_u32 s40, s2, {N_CONV}')
    if enable[1]: col(a)
    else: a('s_endpgm')
    a.label('L_k2_conv')
    a('s_mov_b32 s40, s2')
    if enable[0]: conv(a)
    else: a('s_endpgm')
    a.label('L_k2_end')
    a('s_endpgm')
```

```python
from asmlib import Asm
from model import OFF_X1, OFF_WT, OFF_UT, OFF_KR, OFF_Z, OFF_YT
from gen_p1 import prologue, end, mark, srd, hexf, SEL_LO, SEL_HI

N_IROW = 256
N_OUT = 80
NWG = N_IROW + N_OUT
P3_LDS = 32768
VGPR = 168
OUT_BYTES = 2048 * 1280 * 2

def irow(a):
    a.comment('---------------- inverse row DFT ----------------')
    a('s_lshr_b32 s41, s40, 2')
    a('s_and_b32 s42, s40, 3')
    a('s_getpc_b64 s[30:31]')
    a.label('L_ir_pc')
    a('s_add_u32 s30, s30, T_P3 - L_ir_pc')
    a('s_addc_u32 s31, s31, 0')
    srd(a, 68, 30, 16384)
    srd(a, 64, 24, OUT_BYTES)
    a('v_lshlrev_b32 v2, 4, v0')
    a('s_lshl_b32 s45, s3, 12')
    for k in range(4):
        a(f's_add_u32 m0, s45, {1024 * k}')
        a(f's_add_u32 s49, s45, {1024 * k}')
        a('buffer_load_dwordx4 v2, s[68:71], s49 offen lds')
    a('v_and_b32 v3, 31, v0')
    a('v_lshrrev_b32 v4, 5, v0')
    a('v_and_b32 v5, 3, v3')
    a('v_lshl_add_u32 v5, v5, 1, v4')
    a('s_lshl_b32 s46, s42, 3')
    a('v_add_u32 v5, s46, v5')
    a('s_lshr_b32 s47, s41, 1')
    a('s_and_b32 s47, s47, 15')
    a('v_xor_b32 v5, s47, v5')
    a('v_lshlrev_b32 v5, 4, v5')
    a('v_lshrrev_b32 v6, 2, v3')
    a('v_lshl_add_u32 v5, v6, 15, v5')
    a('s_lshl_b32 s46, s41, 9')
    a('s_lshl_b32 s47, s3, 2')
    a('s_add_u32 s46, s46, s47')
    a(f's_add_u32 s46, s46, {OFF_Z}')
    LZ = 8
    for kb in range(10):
        a(f'buffer_load_dword v{LZ + kb}, v5, s[60:63], s46 offen')
        a(f's_add_u32 s46, s46, {8 * 32768}')
    a(f'v_mov_b32 v{LZ + 10}, 0')
    a(f'v_mov_b32 v{LZ + 11}, 0')
    a('v_cmp_eq_u32 vcc, 0, v3')
    a('s_and_saveexec_b64 s[52:53], vcc')
    a(f'buffer_load_dword v{LZ + 10}, v5, s[60:63], s46 offen')
    a('s_mov_b64 exec, s[52:53]')
    a('s_lshr_b32 s43, s42, 1')
    a('s_lshl_b32 s43, s43, 4')
    a('s_and_b32 s44, s42, 1')
    a('s_lshl_b32 s44, s44, 2')
    a('s_add_u32 s43, s43, s44')
    a('s_lshr_b32 s44, s3, 1')
    a('s_lshl_b32 s44, s44, 3')
    a('s_add_u32 s43, s43, s44')
    a('s_and_b32 s44, s3, 1')
    a('s_lshl_b32 s44, s44, 1')
    a('s_add_u32 s43, s43, s44')
    a('s_lshl_b32 s43, s43, 6')
    a('s_add_u32 s43, s43, s41')
    a('s_mul_i32 s43, s43, 2560')
    a('s_add_u32 s43, s43, 1280')
    a(f's_add_u32 s44, s43, {64 * 2560}')
    a('v_mul_u32_u24 v6, 40, v3')
    a('v_lshl_add_u32 v6, v4, 3, v6')
    a(f's_mov_b32 s54, {SEL_LO}')
    a(f's_mov_b32 s55, {SEL_HI}')
    a('s_waitcnt vmcnt(11)')
    a('s_barrier')
    GC, GS, TC, TS, FP = 20, 28, 36, 52, 68
    def rd(dst, off): a(f'ds_read_b128 v[{dst}:{dst + 3}], v2 offset:{off}')
    for t in range(2): rd(GC + 4 * t, 1024 * t)
    for t in range(2): rd(GS + 4 * t, 2048 + 1024 * t)
    for k in range(4): rd(TC + 4 * k, 4096 + 1024 * k)
    for k in range(4): rd(TS + 4 * k, 8192 + 1024 * k)
    for k in range(4): rd(FP + 4 * k, 12288 + 1024 * k)
    DF = [84, 92]
    VR = [100, 132]; VI = [116, 148]
    a('s_waitcnt vmcnt(0)')
    mark(a, 0)
    for h in range(2):
        sel = 's54' if h == 0 else 's55'
        for j in range(4): a(f'v_perm_b32 v{DF[h] + j}, v{LZ + 2 * j + 1}, v{LZ + 2 * j}, {sel}')
        a(f'v_perm_b32 v{DF[h] + 4}, v{LZ + 9}, v{LZ + 8}, {sel}')
        a(f'v_perm_b32 v{DF[h] + 5}, v{LZ + 11}, v{LZ + 10}, {sel}')
        a(f'v_mov_b32 v{DF[h] + 6}, 0')
        a(f'v_mov_b32 v{DF[h] + 7}, 0')
    a('s_waitcnt lgkmcnt(12)')
    for h in range(2):
        for (V, G) in ((VR[h], GC), (VI[h], GS)):
            for t in range(2):
                c = '0' if t == 0 else f'v[{V}:{V + 15}]'
                a(f'v_mfma_f32_32x32x16_bf16 v[{V}:{V + 15}], v[{DF[h] + 4 * t}:{DF[h] + 4 * t + 3}], v[{G + 4 * t}:{G + 4 * t + 3}], {c}')
    a('s_waitcnt lgkmcnt(0)')
    for h in range(2):
        PK = 20 if h == 0 else 84
        for i in range(16):
            a(f'v_mul_f32 v7, v{VR[h] + i}, v{TC + i}')
            a(f'v_mul_f32 v3, v{VI[h] + i}, v{TC + i}')
            a(f'v_fma_f32 v7, -v{VI[h] + i}, v{TS + i}, v7')
            a(f'v_fmac_f32 v3, v{VR[h] + i}, v{TS + i}')
            a(f'v_cvt_pk_bf16_f32 v{PK + i}, v7, v3')
        Y = VR[h]
        for tau in range(4):
            c = '0' if tau == 0 else f'v[{Y}:{Y + 15}]'
            a(f'v_mfma_f32_32x32x16_bf16 v[{Y}:{Y + 15}], v[{PK + 4 * tau}:{PK + 4 * tau + 3}], v[{FP + 4 * tau}:{FP + 4 * tau + 3}], {c}')
    mark(a, 1)
    for h in range(2):
        Y = VR[h]; O = VI[h]
        for k in range(6): a(f'v_cvt_pk_bf16_f32 v{O + k}, v{Y + 2 * k}, v{Y + 2 * k + 1}')
        so = 's43' if h == 0 else 's44'
        a(f'buffer_store_dwordx2 v[{O}:{O + 1}], v6, s[64:67], {so} offen')
        a(f'buffer_store_dwordx2 v[{O + 2}:{O + 3}], v6, s[64:67], {so} offen offset:16')
        a('s_mov_b32 exec_hi, 0')
        a(f'buffer_store_dwordx2 v[{O + 4}:{O + 5}], v6, s[64:67], {so} offen offset:32')
        a('s_mov_b32 exec_hi, -1')
    end(a)

def aout(a):
    a.comment('---------------- yT -> out transposition ----------------')
    a('s_lshl_b32 s41, s40, 2')
    a('s_add_u32 s41, s41, s3')
    a('s_lshl_b32 s46, s3, 13')
    a(f's_mov_b32 s54, {SEL_LO}')
    a(f's_mov_b32 s55, {SEL_HI}')
    srd(a, 64, 24, OUT_BYTES)
    a('s_mul_i32 s42, s41, 6554')
    a('s_lshr_b32 s42, s42, 16')
    a('s_mul_i32 s43, s42, 10')
    a('s_sub_u32 s43, s41, s43')
    a('v_and_b32 v2, 7, v0')
    a('v_lshrrev_b32 v3, 3, v0')
    a('s_lshl_b32 s44, s43, 18')
    a('s_lshl_b32 s45, s42, 7')
    a('s_add_u32 s44, s44, s45')
    a(f's_add_u32 s44, s44, {OFF_YT}')
    a('v_lshlrev_b32 v4, 12, v3')
    a('v_lshl_add_u32 v4, v2, 4, v4')
    for t in range(8):
        a(f'buffer_load_dwordx4 v[{16 + 4 * t}:{19 + 4 * t}], v4, s[60:63], s44 offen')
        if t < 7: a(f's_add_u32 s44, s44, {8 * 4096}')
    a('v_lshlrev_b32 v6, 7, v3')
    a('v_lshl_add_u32 v6, v2, 4, v6')
    a('v_add_u32 v6, s46, v6')
    for t in range(8):
        if t == 0: a('v_mov_b32 v8, v6')
        else: a(f'v_xor_b32 v8, {t << 4}, v6')
        a(f's_waitcnt vmcnt({7 - t})')
        a(f'ds_write_b128 v8, v[{16 + 4 * t}:{19 + 4 * t}] offset:{1024 * t}')
    mark(a, 0)
    a('v_xor_b32 v4, v2, v3')
    a('v_lshlrev_b32 v4, 4, v4')
    a('v_lshl_add_u32 v4, v2, 10, v4')
    a('v_add_u32 v4, s46, v4')
    for j in range(8):
        a(f'ds_read_b128 v[{64 + 4 * j}:{67 + 4 * j}], v4 offset:{128 * j}')
    a('s_mul_i32 s44, s42, 163840')
    a('s_lshl_b32 s45, s43, 7')
    a('s_add_u32 s44, s44, s45')
    a('v_mul_u32_u24 v5, 20480, v3')
    a('v_lshl_add_u32 v5, v2, 4, v5')
    a('s_waitcnt lgkmcnt(0)')
    for t in range(8):
        sel = 's54' if t % 2 == 0 else 's55'
        for dw in range(4):
            a(f'v_perm_b32 v{16 + 4 * t + dw}, v{64 + 4 * (2 * dw + 1) + (t >> 1)}, v{64 + 4 * (2 * dw) + (t >> 1)}, {sel}')
        a(f'buffer_store_dwordx4 v[{16 + 4 * t}:{19 + 4 * t}], v5, s[64:67], s44 offen')
        if t < 7: a('s_add_u32 s44, s44, 2560')
    end(a)

def kernel_p3(a, enable=(1, 1)):
    a('.set STAMP_BASE, 0x40000')
    a('.p2align 8')
    a.label('k3_kernel')
    a(f's_cmp_ge_u32 s2, {NWG}')
    a('s_cbranch_scc1 L_k3_end')
    prologue(a)
    a(f's_cmp_lt_u32 s2, {N_IROW}')
    a('s_cbranch_scc1 L_k3_irow')
    a(f's_sub_u32 s40, s2, {N_IROW}')
    if enable[1]: aout(a)
    else: a('s_endpgm')
    a.label('L_k3_irow')
    a('s_mov_b32 s40, s2')
    if enable[0]: irow(a)
    else: a('s_endpgm')
    a.label('L_k3_end')
    a('s_endpgm')
```

```python
import numpy as np
L, D, N, DF = 2048, 640, 128, 321
def bf2f(u16): return (u16.astype(np.uint32) << 16).view(np.float32)
def f2bf(x):
    x = np.ascontiguousarray(x, dtype=np.float32); u = x.view(np.uint32)
    return ((u + 0x7FFF + ((u >> 16) & 1)) >> 16).astype(np.uint16)
def rbf(x): return bf2f(f2bf(x))
def sigma(t, g, e): return 16 * t + 8 * (e >> 2) + 4 * g + (e & 3)
def mrow(g, i): return 4 * g + (i & 3) + 8 * (i >> 2)

OFF_X1 = 0x000000
OFF_WT = 0x300000
OFF_UT = 0x600000
OFF_KR = 0x900000
OFF_Z  = 0xC00000
OFF_YT = 0xF00000

def pos_bf16():
    return rbf(np.arange(L, dtype=np.float32)).astype(np.float64)

def model_K(inp):
    lA = bf2f(inp[1]).astype(np.float64).reshape(D, N); Ai = bf2f(inp[2]).astype(np.float64).reshape(D, N)
    Cr = bf2f(inp[3]).astype(np.float64).reshape(D, N); Ci = bf2f(inp[4]).astype(np.float64).reshape(D, N)
    ldt = bf2f(inp[5]).astype(np.float64)
    dt = rbf(np.exp(ldt)).astype(np.float64)
    Ar = -rbf(np.exp(lA)).astype(np.float64)
    A = (Ar + 1j * Ai) * dt[:, None]
    C = (Cr + 1j * Ci) * dt[:, None]
    pos = pos_bf16()
    up, inv = np.unique(pos, return_inverse=True)
    K = np.zeros((D, L))
    for d in range(D):
        P = np.exp(A[d][:, None] * up[None, :])
        K[d] = (2.0 * (C[d][:, None] * P).sum(0).real)[inv]
    return K

def x1_index():
    k2 = np.arange(324)[:, None, None]; s = np.arange(L)[None, :, None]; ri = np.arange(2)[None, None, :]
    q = k2 >> 2; c = k2 & 3
    al = s >> 6; be = s & 63
    t = al >> 4; g = (al >> 2) & 1; e = ((al >> 3) & 1) * 4 + (al & 3)
    ag = 2 * t + g
    p = (ag * 8 + 2 * c + ri) ^ ((be >> 1) & 15)
    byte = q * 32768 + be * 512 + p * 16 + 2 * e
    return byte // 2

def model_X1(inp):
    x = bf2f(inp[7]).astype(np.float64).reshape(L, D)
    return np.fft.rfft(x, axis=1)

def model_Z(inp):
    x = bf2f(inp[7]).astype(np.float64).reshape(L, D)
    W = bf2f(inp[8]).astype(np.float64).reshape(L, DF) + 1j * bf2f(inp[9]).astype(np.float64).reshape(L, DF)
    X = np.fft.rfft2(x) * W
    Z = np.fft.ifft(X, axis=0) * L
    Z[:, 0] *= 0.5; Z[:, 320] *= 0.5
    return Z

def model_conv(inp, K):
    u = bf2f(inp[0]).astype(np.float64).reshape(L, D)
    Kf = np.fft.rfft(K, 2 * L, axis=1); Uf = np.fft.rfft(u.T, 2 * L, axis=1)
    return np.fft.irfft(Kf * Uf, 2 * L, axis=1)[:, :L]
```

```python
import numpy as np
from model import sigma, mrow, f2bf
LANES = np.arange(64); X = LANES & 31; G = LANES >> 5

def frag_bf16(fn):
    a = np.zeros((64, 8), np.float32)
    for l in range(64):
        for e in range(8):
            a[l, e] = fn(l & 31, l >> 5, e)
    return f2bf(a).reshape(-1).view(np.uint32)

def regs_f32(fn, n):
    a = np.zeros((n // 4, 64, 4), np.float32)
    for i in range(n):
        for l in range(64):
            a[i // 4, l, i % 4] = fn(l & 31, l >> 5, i)
    return a.reshape(-1).view(np.uint32)

def regs_f16pair(fn, n):
    a = np.zeros((n // 4, 64, 4, 2), np.float16)
    for i in range(n):
        for l in range(64):
            c, s = fn(l & 31, l >> 5, i)
            a[i // 4, l, i % 4, 0] = c; a[i // 4, l, i % 4, 1] = s
    return a.reshape(-1).view(np.uint32)

PI2 = 2 * np.pi
def table_p1():
    out = []
    for t in range(2): out.append(frag_bf16(lambda x, g, e: np.cos(PI2 * (16 * t + 8 * g + e) * x / 32)))
    for t in range(2): out.append(frag_bf16(lambda x, g, e: -np.sin(PI2 * (16 * t + 8 * g + e) * x / 32)))
    def bb(g, i): return 4 * g + (i & 3) + 8 * (i >> 2)
    out.append(regs_f32(lambda x, g, i: np.cos(PI2 * bb(g, i) * x / 640) if bb(g, i) < 20 else 0.0, 12))
    out.append(regs_f32(lambda x, g, i: np.sin(PI2 * bb(g, i) * x / 640) if bb(g, i) < 20 else 0.0, 12))
    def Gf(tau):
        def f(m, g, e):
            b = 8 * tau + 4 * g + (e >> 1); ri = e & 1; kb = m >> 1; ro = m & 1
            if b >= 20 or kb > 10: return 0.0
            th = PI2 * b * kb / 20
            if ro == 0: return np.cos(th) if ri == 0 else np.sin(th)
            return -np.sin(th) if ri == 0 else np.cos(th)
        return f
    for tau in range(3): out.append(frag_bf16(Gf(tau)))
    return np.concatenate(out)

def table_p2():
    out = []
    for t in range(2): out.append(frag_bf16(lambda x, g, e: np.cos(PI2 * x * sigma(t, g, e) / 32)))
    for t in range(2): out.append(frag_bf16(lambda x, g, e: np.sin(PI2 * x * sigma(t, g, e) / 32)))
    for t in range(2): out.append(frag_bf16(lambda x, g, e: np.cos(PI2 * x * (2 * sigma(t, g, e) + 1) / 64)))
    for t in range(2): out.append(frag_bf16(lambda x, g, e: np.sin(PI2 * x * (2 * sigma(t, g, e) + 1) / 64)))
    for t in range(2): out.append(frag_bf16(lambda x, g, e: np.cos(PI2 * sigma(t, g, e) * (2 * x + 1) / 64)))
    for t in range(2): out.append(frag_bf16(lambda x, g, e: np.sin(PI2 * sigma(t, g, e) * (2 * x + 1) / 64)))
    cs = lambda th: (np.cos(th), np.sin(th))
    out.append(regs_f16pair(lambda x, g, i: cs(PI2 * (2 * mrow(g, i)) * x / 2048), 16))
    out.append(regs_f16pair(lambda x, g, i: cs(PI2 * (2 * mrow(g, i) + 1) * x / 2048), 16))
    out.append(regs_f16pair(lambda x, g, i: cs(PI2 * (2 * x + 1) * mrow(g, i) / 2048), 16))
    return np.concatenate(out)

def table_p3():
    out = []
    scale = 2.0 / (2048.0 * 640.0)
    def Gp(t, im):
        def f(n, g, e):
            kb = 8 * t + e; ri = g; b = n
            if b >= 20 or kb > 10: return 0.0
            th = PI2 * b * kb / 20
            if not im: return scale * (np.cos(th) if ri == 0 else -np.sin(th))
            return scale * (np.sin(th) if ri == 0 else np.cos(th))
        return f
    for t in range(2): out.append(frag_bf16(Gp(t, False)))
    for t in range(2): out.append(frag_bf16(Gp(t, True)))
    out.append(regs_f32(lambda x, g, i: np.cos(PI2 * x * mrow(g, i) / 640), 16))
    out.append(regs_f32(lambda x, g, i: np.sin(PI2 * x * mrow(g, i) / 640), 16))
    def Fp(tau):
        def f(a, g, e):
            i = 4 * tau + (e >> 1); ri = e & 1; ka = mrow(g, i)
            th = PI2 * a * ka / 32
            return np.cos(th) if ri == 0 else -np.sin(th)
        return f
    for tau in range(4): out.append(frag_bf16(Fp(tau)))
    return np.concatenate(out)

def emit_table(name, arr):
    lines = ['.p2align 8', name + ':']
    arr = np.asarray(arr, dtype=np.uint32)
    for i in range(0, len(arr), 8):
        lines.append('.long ' + ','.join('0x%x' % v for v in arr[i:i + 8]))
    return lines
if __name__ == '__main__':
    for f in (table_p1, table_p2, table_p3):
        t = f(); print(f.__name__, t.nbytes)
```

```python
import sys
sys.path.insert(0, 'dev')
from asmlib import Asm
import tables
import gen_p1

HDR_COMMENT = """; concat_heads( S4D long convolution , GFNet spectral filter ) - three launches
"""

def desc(name, vgpr, sgpr=102):
    acc = (vgpr + 3) // 4 * 4
    return f""".p2align 6
.amdhsa_kernel {name}
  .amdhsa_next_free_vgpr {vgpr}
  .amdhsa_next_free_sgpr {sgpr}
  .amdhsa_accum_offset {acc}
  .amdhsa_group_segment_fixed_size 0
  .amdhsa_kernarg_size 104
  .amdhsa_user_sgpr_count 2
  .amdhsa_user_sgpr_kernarg_segment_ptr 1
  .amdhsa_system_sgpr_workgroup_id_x 1
.end_amdhsa_kernel
"""

def build(path, phases=(1, 2, 3), stamp=False, p1_enable=(1, 1, 1), p2_enable=(1, 1), p3_enable=(1, 1)):
    gen_p1.STAMP = stamp
    launches = []; kernels = []; descs = []
    if 1 in phases:
        a = Asm(); gen_p1.kernel_p1(a, p1_enable)
        n = gen_p1.N_KGEN + gen_p1.N_BROW + gen_p1.N_TILE
        launches.append(f'; @launch kernel=k1_kernel grid=({n},1,1) block=(256,1,1) lds={gen_p1.P1_LDS}')
        kernels.append(('k1_kernel', a)); descs.append(desc('k1_kernel', 160))
    if 2 in phases:
        import gen_p2
        a = Asm(); gen_p2.kernel_p2(a, p2_enable)
        launches.append(f'; @launch kernel=k2_kernel grid=({gen_p2.NWG},1,1) block=(256,1,1) lds={gen_p2.P2_LDS}')
        kernels.append(('k2_kernel', a)); descs.append(desc('k2_kernel', gen_p2.VGPR))
    if 3 in phases:
        import gen_p3
        a = Asm(); gen_p3.kernel_p3(a, p3_enable)
        launches.append(f'; @launch kernel=k3_kernel grid=({gen_p3.NWG},1,1) block=(256,1,1) lds={gen_p3.P3_LDS}')
        kernels.append(('k3_kernel', a)); descs.append(desc('k3_kernel', gen_p3.VGPR))
    out = [HDR_COMMENT.rstrip('\n')] + launches
    out.append('.amdgcn_target "amdgcn-amd-amdhsa--gfx950"')
    out.append('.text')
    tot = 0
    for name, a in kernels:
        out.append(f'.globl {name}')
        out.append(f'.type {name},@function')
        lines, npad = a.pad()
        tot += npad
        out += lines
    out += tables.emit_table('T_P1', tables.table_p1())
    out += tables.emit_table('T_P2', tables.table_p2())
    out += tables.emit_table('T_P3', tables.table_p3())
    out.append('.section .rodata,"a"')
    out += descs
    open(path, 'w').write('\n'.join(out) + '\n')
    return tot

if __name__ == '__main__':
    path = sys.argv[1]
    phases = tuple(int(c) for c in sys.argv[2]) if len(sys.argv) > 2 else (1, 2, 3)
    n = build(path, phases)
    print('generated', path, 'nops inserted:', n)
```
